```python
import torch

def _softmax(x, axis=-1):
    return torch.softmax(x, dim=axis)
def _gelu(x):
    return torch.nn.functional.gelu(x, approximate="tanh")
def _silu(x):
    return torch.nn.functional.silu(x)
def _sigmoid(x):
    return torch.sigmoid(x)
def _layernorm(x, axis=-1, eps=1e-5):
    m = x.mean(dim=axis, keepdim=True)
    v = x.var(dim=axis, keepdim=True, unbiased=False)
    return (x - m) / torch.sqrt(v + eps)
def _scatter_add(tgt, idx, src, axis=0):
    return tgt.clone().index_add_(axis, idx, src)
def _segment_sum(src, seg, n):
    out = torch.zeros((n,) + src.shape[1:], dtype=src.dtype)
    return out.index_add_(0, seg, src)
def _pad(x, pw):
    flat = tuple(v for pair in reversed(pw) for v in pair)
    return torch.nn.functional.pad(x, flat)

kernel_name = 'recurrent_scan__compressed_kv_cla__mixer_channel_mlp__decode'

def setup_inputs():

    _w = (lambda a: (lambda t: t.to(torch.bfloat16) if t.is_floating_point() else t)(torch.as_tensor(a)))
    def _A_setup():
        B, H, Sq, Sk, D, M = 2, 32, 1, 8192, 128, 576
        Dc = 4 * D
        return {
            "x": _w((lambda *s: torch.randn(*s, dtype=torch.bfloat16) * 0.1)(B, Sq, M)),
            "c_kv": _w((lambda *s: torch.randn(*s, dtype=torch.bfloat16) * 3.2)(B, Sk, Dc)),
            "w_q": _w((lambda *s: torch.randn(*s, dtype=torch.bfloat16) * 0.8)(M, H, D) * (M ** -0.5)),
            "w_uk": _w((lambda *s: torch.randn(*s, dtype=torch.bfloat16) * 0.8)(Dc, H, D) * (Dc ** -0.5)),
            "w_uv": _w((lambda *s: torch.randn(*s, dtype=torch.bfloat16) * 3.2)(Dc, H, D) * (Dc ** -0.5)),
            "w_o": _w((lambda *s: torch.randn(*s, dtype=torch.bfloat16) * 3.2)(H, D, M) * ((H * D) ** -0.5)),
        }
    _A_in = _A_setup()

    def _B_setup():
        B, S, D, F = 2, 1, 576, 4608
        return {
            "x": _w((lambda *s: torch.randn(*s, dtype=torch.bfloat16) * 0.1)(B, S, D)),
            "w1": _w((lambda *s: torch.randn(*s, dtype=torch.bfloat16) * 3.2)(D, F) * (D ** -0.5)),
            "b1": _w((lambda *s: torch.randn(*s, dtype=torch.bfloat16) * 3.2)(F)),
            "w2": _w((lambda *s: torch.randn(*s, dtype=torch.bfloat16) * 3.2)(F, D) * (F ** -0.5)),
            "b2": _w((lambda *s: torch.randn(*s, dtype=torch.bfloat16) * 3.2)(D)),
        }
    _B_in = _B_setup()

    return {
        "A_x": _A_in["x"],
        "A_c_kv": _A_in["c_kv"],
        "A_w_q": _A_in["w_q"],
        "A_w_uk": _A_in["w_uk"],
        "A_w_uv": _A_in["w_uv"],
        "A_w_o": _A_in["w_o"],
        "B_x": _B_in["x"],
        "B_w1": _B_in["w1"],
        "B_b1": _B_in["b1"],
        "B_w2": _B_in["w2"],
        "B_b2": _B_in["b2"],
    }

def reference(A_x, A_c_kv, A_w_q, A_w_uk, A_w_uv, A_w_o, B_x, B_w1, B_b1, B_w2, B_b2):
    def _A_ref(x, c_kv, w_q, w_uk, w_uv, w_o):
        B, Sq, M = x.shape[0], x.shape[1], x.shape[2]
        Sk = c_kv.shape[1]
        H, D = w_q.shape[1], w_q.shape[2]
        q = torch.einsum("bqm,mhd->bhqd", x, w_q)
        k = torch.einsum("bkc,chd->bhkd", c_kv, w_uk)
        v = torch.einsum("bkc,chd->bhkd", c_kv, w_uv)
        scores = torch.einsum("bhqd,bhkd->bhqk", q, k) * (D ** -0.5)
        off = Sk - Sq
        qi = torch.arange(Sq)[:, None]
        kj = torch.arange(Sk)[None, :]
        cmask = kj <= (qi + off)
        scores = torch.where(cmask[None, None], scores, -1e9)
        p = _softmax(scores, axis=-1)
        ctx = torch.einsum("bhqk,bhkd->bhqd", p, v)
        return torch.einsum("bhqd,hdm->bqm", ctx, w_o)

    def _B_ref(x, w1, b1, w2, b2):
        y = _layernorm(x, axis=-1)
        h = _gelu(torch.einsum("bsd,df->bsf", y, w1) + b1)
        return torch.einsum("bsf,fd->bsd", h, w2) + b2

    x = A_x
    xn = _layernorm(x, axis=-1)
    s = _A_ref(xn, A_c_kv, A_w_q, A_w_uk, A_w_uv, A_w_o)
    g = _silu(_B_ref(xn, B_w1, B_b1, B_w2, B_b2))
    return x + s * g
```

```python
NAME = "recurrent_scan__compressed_kv_cla__mixer_channel_mlp__decode"
KARG = dict(x=0, ckv=8, wq=16, wuk=24, wuv=32, wo=40, bx=48, w1=56, b1=64, w2=72, b2=80, out=88, dbg=96, ws=104)
SIZE = dict(x=2304, ckv=16777216, wq=4718592, wuk=4194304, wuv=4194304, wo=4718592, bx=2304, w1=5308416, b1=9216, w2=5308416, b2=1152, out=2304, dbg=256, ws=268435456)

class Asm:
    def __init__(self):
        self.l = []
        self.nlab = 0
    def __call__(self, s):
        for x in s.split("\n"):
            x = x.strip()
            if x:
                self.l.append(x if x.endswith(":") else "    " + x)
    def label(self, p="L"):
        self.nlab += 1
        return f"{p}_{self.nlab}"
    def text(self):
        return "\n".join(self.l) + "\n"

def header(launch_lines):
    s = "".join(f"; @launch {x}\n" for x in launch_lines)
    s += '.amdgcn_target "amdgcn-amd-amdhsa--gfx950"\n.text\n'
    return s

def kernel(name, body, vgpr=256, sgpr=102, accum=None):
    if accum is None:
        accum = min(256, (vgpr + 3) // 4 * 4)
    s = f".text\n.globl {name}\n.p2align 8\n.type {name},@function\n{name}:\n" + body
    s += f""".section .rodata,"a"
.p2align 6
.amdhsa_kernel {name}
  .amdhsa_next_free_vgpr {vgpr}
  .amdhsa_next_free_sgpr {sgpr}
  .amdhsa_accum_offset {accum}
  .amdhsa_group_segment_fixed_size 0
  .amdhsa_kernarg_size 112
  .amdhsa_user_sgpr_count 2
  .amdhsa_user_sgpr_kernarg_segment_ptr 1
  .amdhsa_system_sgpr_workgroup_id_x 1
.end_amdhsa_kernel
"""
    return s

import re
_R = re.compile(r"\b([vas])(\d+)\b|\b([vas])\[(\d+):(\d+)\]|\b(vcc|exec|m0|vcc_lo|vcc_hi|exec_lo|exec_hi)\b")
TRANS = ("v_exp_", "v_log_", "v_rcp_", "v_rsq_", "v_sqrt_", "v_sin_", "v_cos_")

def _regs(op):
    out = set()
    for m in _R.finditer(op):
        if m.group(1): out.add((m.group(1), int(m.group(2))))
        elif m.group(3): out |= {(m.group(3), i) for i in range(int(m.group(4)), int(m.group(5)) + 1)}
        else: out.add((m.group(6).split("_")[0], 0))
    return out

def _split_ops(rest):
    ops, depth, cur = [], 0, ""
    for ch in rest:
        if ch == "[": depth += 1
        if ch == "]": depth -= 1
        if ch == "," and depth == 0: ops.append(cur.strip()); cur = ""
        else: cur += ch
    if cur.strip(): ops.append(cur.strip())
    return ops

class Ins:
    def __init__(self, line):
        s = line.split(";")[0].strip()
        self.text = line
        self.label = s.endswith(":") or s == "" or s.startswith(".")
        self.op = s.split()[0] if s else ""
        rest = s[len(self.op):]
        ops = _split_ops(rest)
        op = self.op
        self.mfma = op.startswith("v_mfma")
        self.valu = op.startswith("v_") and not self.mfma
        self.vmem = op.startswith(("buffer_", "global_"))
        self.ds = op.startswith("ds_")
        self.salu = op.startswith("s_")
        self.dpp = "_dpp" in op or "row_" in rest or "quad_perm" in rest
        self.perml = op.startswith("v_permlane")
        self.rdl = op.startswith(("v_readlane", "v_readfirstlane"))
        self.trans = op.startswith(TRANS)
        self.w, self.r = set(), set()
        self.srcc = set(); self.ab = set(); self.stdata = set()
        self.states = 1
        if self.label: self.states = 0; return
        if op == "s_nop": self.states = int(ops[0], 0) + 1; return
        R = [_regs(o) for o in ops]
        if self.mfma:
            self.w = R[0]; self.ab = R[1] | R[2]; self.srcc = R[3]; self.r = self.ab | self.srcc
            self.passes = 8 if "32x32" in op else 4
        elif self.valu:
            self.w = set(R[0]); self.r = set().union(*R[1:]) if len(R) > 1 else set()
            if op.startswith(("v_add_co", "v_sub_co", "v_addc_co", "v_subb_co")): self.w |= R[1]
            if op.startswith(("v_fmac", "v_dot2c", "v_writelane", "v_pk_fmac")) or self.dpp or "sdwa" in op: self.r |= R[0]
            if op.startswith(("v_swap", "v_permlane16_swap", "v_permlane32_swap")): self.w |= R[1]; self.r |= R[0]
            if op.startswith("v_cndmask") and len(ops) == 3: self.r.add(("vcc", 0))
        elif self.vmem:
            lds = " lds" in rest
            if "load" in op and not lds:
                self.w = R[0]; self.r = set().union(*R[1:])
            else:
                self.r = set().union(*R)
                if lds: self.r.add(("m0", 0))
                if "store_dwordx4" in op or "store_dwordx3" in op: self.stdata = R[0] if op.startswith("buffer") else R[1]
        elif self.ds:
            if op.startswith(("ds_read", "ds_bpermute", "ds_swizzle")) or "_rtn" in op:
                self.w = R[0]; self.r = set().union(*R[1:])
            else: self.r = set().union(*R)
        elif self.salu:
            if op.startswith(("s_cmp", "s_cbranch", "s_branch", "s_waitcnt", "s_barrier", "s_sleep", "s_setprio", "s_endpgm", "s_bitcmp")):
                self.r = set().union(*R) if R else set()
            elif R:
                self.w = set(R[0]); self.r = set().union(*R[1:]) if len(R) > 1 else set()
                if "saveexec" in op: self.w.add(("exec", 0))

def _need(p, c):
    n = 0
    vw = {x for x in p.w if x[0] in "va" and len(x[0]) == 1}
    sw = {x for x in p.w if x[0] in ("s", "vcc")}
    if p.valu:
        if c.mfma and vw & c.r: n = max(n, 2)
        if c.valu and (c.dpp or c.perml) and vw & c.r: n = max(n, 2)
        if c.rdl and vw & c.r: n = max(n, 1)
        if c.valu and sw & c.r: n = max(n, 4 if c.op.startswith(("v_readlane", "v_writelane")) else 2)
        if c.vmem and sw & c.r: n = max(n, 5)
        if c.salu and sw & c.r: n = max(n, 1)
        if p.trans and (c.valu or c.mfma) and vw & c.r: n = max(n, 1)
        if ("sdwa" in p.op or "op_sel" in p.text) and c.valu and vw & (c.r | c.w): n = max(n, 1)
        if ("exec", 0) in p.w: n = max(n, 5)
    if (p.vmem or p.ds) and c.valu and c.dpp and vw & c.r: pass
    if p.mfma:
        big, ovl, war = (12, 10, 7) if p.passes == 8 else (8, 6, 3)
        if c.mfma:
            if p.w & c.ab: n = max(n, big)
            if p.w & c.srcc and not (p.w == c.srcc and p.passes == c.passes): n = max(n, ovl)
            if p.w & c.w and not (p.w & c.srcc): n = max(n, ovl)
        elif c.valu or c.vmem or c.ds:
            if p.w & (c.r | c.w): n = max(n, big)
            if c.valu and p.srcc & c.w: n = max(n, war)
    if p.salu and ("m0", 0) in p.w and c.vmem and ("m0", 0) in c.r: n = max(n, 1)
    if p.stdata and p.stdata & c.w: n = max(n, 2)
    return n

def fix_hazards(text):
    out = []
    for line in text.split("\n"):
        c = Ins(line)
        if not c.label:
            dist = 0; pad = 0
            for p in reversed(out):
                if dist >= 13: break
                if not p.label:
                    pad = max(pad, _need(p, c) - dist)
                dist += p.states
            if pad > 0:
                out.append(Ins(f"    s_nop {pad-1}"))
        out.append(c)
    return "\n".join(i.text for i in out)
```

```python
import sys, math, struct
from asmlib import *

def fbits(x): return "0x%08x" % struct.unpack("<I", struct.pack("<f", x))[0]
DPP = "row_mask:0xf bank_mask:0xf"
BIG = "0x7f000000"
QP, QA, ML, CX, HP, SP, OP, PT = 0x000000, 0x040000, 0x060000, 0x080000, 0x100000, 0x200000, 0x400000, 0x800000
PTR = dict(x=4, ckv=6, wq=8, wuk=10, wuv=12, wo=14, w1=18, b1=20, w2=22, b2=24, out=26, dbg=28, ws=30)

def prologue(a, nwg):
    a(f"s_cmp_ge_u32 s2, {nwg}\ns_cbranch_scc1 {a.end}")
    a("s_load_dwordx16 s[4:19], s[0:1], 0\ns_load_dwordx8 s[20:27], s[0:1], 64\ns_load_dwordx4 s[28:31], s[0:1], 96")
    a("v_lshrrev_b32 v1, 6, v0\nv_readfirstlane_b32 s3, v1\nv_and_b32 v0, 63, v0")
    a("s_and_b32 s96, s2, 7\ns_lshr_b32 s97, s2, 3")
    a("s_lshr_b32 s98, s97, 3\ns_lshl_b32 s99, s96, 2\ns_add_u32 s98, s98, s99")
    a("s_and_b32 s99, s97, 7")
    a("v_lshrrev_b32 v1, 4, v0\nv_and_b32 v2, 15, v0")
    a("s_waitcnt lgkmcnt(0)")

def srd(a, name, r):
    p = PTR[name]
    a(f"s_mov_b32 s{r}, s{p}\ns_and_b32 s{r+1}, s{p+1}, 0xffff\ns_mov_b32 s{r+2}, {SIZE[name]}\ns_mov_b32 s{r+3}, 0x20000")
    return f"s[{r}:{r+3}]"

def masks(a, m, t0):
    a(f"v_and_b32 v{t0}, 1, v0\nv_lshlrev_b32 v{t0}, 4, v{t0}\nv_mov_b32 v{t0+1}, 0xffff\nv_lshlrev_b32 v{t0}, v{t0}, v{t0+1}")
    a(f"v_bfe_u32 v{t0+1}, v0, 1, 2")
    for r in range(4):
        a(f"v_cmp_eq_u32 vcc, {r}, v{t0+1}\nv_cndmask_b32 v{m+r}, 0, v{t0}, vcc")

def red16(a, op, v, t):
    a(f"v_mov_b32 v{t}, v{v}\nv_permlane16_swap_b32 v{v}, v{t}\n{op} v{v}, v{v}, v{t}")
def red32(a, op, v, t):
    a(f"v_mov_b32 v{t}, v{v}\nv_permlane32_swap_b32 v{v}, v{t}\n{op} v{v}, v{v}, v{t}")
def dpp(a, op, v, ctl):
    a(f"{op}_dpp v{v}, v{v}, v{v} {ctl} {DPP}")
def red_lo8(a, op, vs):
    for ctl in ("quad_perm:[1,0,3,2]", "quad_perm:[2,3,0,1]", "row_half_mirror"):
        for v in vs: dpp(a, op, v, ctl)
def red_half(a, v, t):
    red_lo8(a, "v_add_f32", [v]); dpp(a, "v_add_f32", v, "row_mirror"); red16(a, "v_add_f32", v, t)
def unpack(a, dst, src, n):
    for i in range(n):
        if i & 1: a(f"v_and_b32 v{dst+i}, 0xffff0000, v{src+i//2}")
        else: a(f"v_lshlrev_b32 v{dst+i}, 16, v{src+i//2}")
def rbf(a, v):
    a(f"v_cvt_pk_bf16_f32 v{v}, v{v}, v{v}\nv_and_b32 v{v}, 0xffff0000, v{v}")

def ln_stats(a, f, t, sm, sr):
    a(f"v_add_f32 v{t}, v{f}, v{f+1}")
    for i in range(2, 18): a(f"v_add_f32 v{t}, v{t}, v{f+i}")
    red_half(a, t, t + 2)
    a(f"v_mul_f32 v{t}, {fbits(1/576)}, v{t}")
    a(f"v_mov_b32 v{t+1}, 0")
    for i in range(18): a(f"v_sub_f32 v{t+2}, v{f+i}, v{t}\nv_fmac_f32 v{t+1}, v{t+2}, v{t+2}")
    red_half(a, t + 1, t + 2)
    a(f"v_mul_f32 v{t+1}, {fbits(1/576)}, v{t+1}")
    rbf(a, t); rbf(a, t + 1)
    a(f"v_add_f32 v{t+1}, {fbits(1e-5)}, v{t+1}"); rbf(a, t + 1)
    a(f"v_sqrt_f32 v{t+1}, v{t+1}"); rbf(a, t + 1)
    a(f"v_rcp_f32 v{t+1}, v{t+1}")
    a(f"v_readlane_b32 s{sm}, v{t}, 0\nv_readlane_b32 s{sm+1}, v{t}, 32\nv_readlane_b32 s{sr}, v{t+1}, 0\nv_readlane_b32 s{sr+1}, v{t+1}, 32")

def ln_apply(a, f, n, vm, vr, t, last):
    for i in range(n): a(f"v_sub_f32 v{f+i}, v{f+i}, v{vm}")
    for i in range(0, n, 2):
        a(f"v_cvt_pk_bf16_f32 v{t}, v{f+i}, v{f+i+1}\nv_lshlrev_b32 v{f+i}, 16, v{t}\nv_and_b32 v{f+i+1}, 0xffff0000, v{t}")
    for i in range(n): a(f"v_mul_f32 v{f+i}, v{f+i}, v{vr}")
    if not last:
        for i in range(0, n, 2):
            a(f"v_cvt_pk_bf16_f32 v{t}, v{f+i}, v{f+i+1}\nv_lshlrev_b32 v{f+i}, 16, v{t}\nv_and_b32 v{f+i+1}, 0xffff0000, v{t}")

def stage_ga(a, mlp, ldf="nt"):
    NQ, ST, name = (24, 9216, "w1") if mlp else (18, 8192, "wq")
    X = srd(a, "x", 32); W = srd(a, name, 36)
    XS, XA, FS, FA, T, M, AOP, WB = 8, 20, 32, 52, 76, 84, 88, 96
    a(f"v_mul_u32_u24 v3, 36, v0")
    a(f"buffer_load_dwordx4 v[{XS}:{XS+3}], v3, {X}, 0 offen\nbuffer_load_dwordx4 v[{XS+4}:{XS+7}], v3, {X}, 0 offen offset:16\nbuffer_load_dword v{XS+8}, v3, {X}, 0 offen offset:32")
    a(f"v_bfe_u32 v{T}, v0, 3, 1\nv_mul_u32_u24 v3, 1152, v{T}\nv_mul_u32_u24 v{T+1}, {NQ*2}, v1\nv_add_u32 v3, v3, v{T+1}\ns_lshl_b32 s42, s40, 1")
    a(f"buffer_load_dwordx4 v[{XA}:{XA+3}], v3, {X}, s42 offen\nbuffer_load_dwordx4 v[{XA+4}:{XA+7}], v3, {X}, s42 offen offset:16")
    a(f"buffer_load_dwordx4 v[{XA+8}:{XA+11}], v3, {X}, s42 offen offset:32" if mlp else f"buffer_load_dword v{XA+8}, v3, {X}, s42 offen offset:32")
    a(f"s_mov_b32 s43, {NQ*ST}\nv_mul_lo_u32 v3, s43, v1\nv_lshl_add_u32 v3, v2, 4, v3")
    a(f"s_mul_i32 s42, s40, {ST}\ns_add_u32 s42, s42, s41")
    for t in range(NQ):
        a(f"buffer_load_dwordx4 v[{WB+4*t}:{WB+4*t+3}], v3, {W}, s42 offen {ldf}\ns_add_u32 s42, s42, {ST}")
    masks(a, M, T)
    a(f"s_waitcnt vmcnt({NQ})")
    unpack(a, FS, XS, 18); unpack(a, FA, XA, NQ)
    ln_stats(a, FS, T, 44, 46)
    a(f"v_and_b32 v{T+4}, 8, v0\nv_cmp_ne_u32 s[48:49], 0, v{T+4}")
    def sel(d, s): a(f"v_mov_b32 v{d}, s{s}\nv_mov_b32 v{T+6}, s{s+1}\nv_cndmask_b32 v{d}, v{d}, v{T+6}, s[48:49]")
    sel(T + 4, 44); sel(T + 5, 46)
    ln_apply(a, FA, NQ, T + 4, T + 5, T + 6, last=not mlp)
    if mlp:
        ln_apply(a, FS, 18, T, T + 1, T + 6, last=False)
        ln_stats(a, FS, T, 44, 46)
        sel(T + 4, 44); sel(T + 5, 46)
        ln_apply(a, FA, NQ, T + 4, T + 5, T + 6, last=True)
    for t in range(NQ):
        ao = AOP + 4 * (t & 1)
        a(f"v_cvt_pk_bf16_f32 v{T}, v{FA+t}, v{FA+t}")
        for r in range(4): a(f"v_and_b32 v{ao+r}, v{T}, v{M+r}")
        a(f"s_waitcnt vmcnt({NQ-1-t})")
        a(f"v_mfma_f32_16x16x32_bf16 v[4:7], v[{ao}:{ao+3}], v[{WB+4*t}:{WB+4*t+3}], {'0' if t == 0 else 'v[4:7]'}")

def k1():
    a = Asm(); a.end = "K1_end"
    prologue(a, 256)
    WS = srd(a, "ws", 92)
    a("s_cmp_eq_u32 s3, 1\ns_cbranch_scc1 K1_mlp")
    a("s_mul_i32 s40, s99, 72\ns_lshl_b32 s41, s98, 8")
    stage_ga(a, False)
    a("v_cvt_pk_bf16_f32 v8, v4, v5\nv_cvt_pk_bf16_f32 v9, v6, v7\nv_mov_b32 v10, v8\nv_mov_b32 v11, v9")
    a("v_permlane16_swap_b32 v8, v10\nv_permlane16_swap_b32 v9, v11")
    a("v_lshrrev_b32 v3, 5, v0\nv_lshlrev_b32 v3, 8, v3\nv_lshl_add_u32 v3, v2, 4, v3")
    a(f"s_lshl_b32 s42, s98, 3\ns_add_u32 s42, s42, s99\ns_lshl_b32 s42, s42, 9\ns_add_u32 s42, s42, {QP}")
    a("s_mov_b32 exec_lo, 0xffff\ns_mov_b32 exec_hi, 0xffff")
    a(f"buffer_store_dwordx4 v[8:11], v3, {WS}, s42 offen")
    a("s_endpgm\nK1_mlp:")
    a("s_cmp_ge_u32 s2, 216\ns_cbranch_scc1 K1_end")
    a("s_mul_i32 s50, s2, 43691\ns_lshr_b32 s50, s50, 18\ns_mul_i32 s51, s50, 6\ns_sub_u32 s51, s2, s51")
    a("s_mul_i32 s40, s51, 96\ns_lshl_b32 s41, s50, 8")
    stage_ga(a, True)
    a(f"v_lshlrev_b32 v3, 4, v0\ns_lshl_b32 s42, s2, 10\ns_add_u32 s42, s42, {HP}")
    a(f"buffer_store_dwordx4 v[4:7], v3, {WS}, s42 offen")
    a("K1_end:\ns_endpgm")
    return kernel("k1_kernel", fix_hazards(a.text()), vgpr=192)

def k2():
    a = Asm(); a.end = "K2_end"
    prologue(a, 256)
    WS = srd(a, "ws", 92); W = srd(a, "wuk", 36)
    a("v_lshlrev_b32 v3, 13, v1\nv_lshl_add_u32 v3, v2, 4, v3")
    a("s_lshl_b32 s42, s99, 19\ns_lshl_b32 s43, s98, 8\ns_add_u32 s42, s42, s43")
    for t in range(16):
        a(f"s_mov_b32 m0, {t*1024}\nv_xor_b32 v4, {t*16}, v3\nbuffer_load_dwordx4 v4, {W}, s42 offen nt lds\ns_add_u32 s42, s42, 32768")
    a("v_and_b32 v4, 7, v0\nv_lshlrev_b32 v4, 9, v4\nv_bfe_u32 v5, v0, 3, 1\nv_lshl_add_u32 v4, v5, 8, v4\nv_lshl_add_u32 v4, v1, 4, v4")
    a(f"s_lshl_b32 s42, s98, 12\ns_add_u32 s42, s42, {QP}")
    for ks in range(4): a(f"buffer_load_dwordx4 v[{8+4*ks}:{11+4*ks}], v4, {WS}, s42 offen offset:{64*ks}")
    a("s_waitcnt vmcnt(4)")
    a("v_xor_b32 v5, v1, v2\nv_lshlrev_b32 v5, 4, v5\nv_lshl_add_u32 v5, v2, 10, v5")
    for ks in range(4):
        a(f"v_xor_b32 v6, {ks*64}, v5")
        for ct in range(4): a(f"ds_read_b128 v[{48+16*ks+4*ct}:{51+16*ks+4*ct}], v6 offset:{256*ct}")
    a("s_waitcnt vmcnt(0) lgkmcnt(0)")
    for ks in range(4):
        for ct in range(4):
            a(f"v_mfma_f32_16x16x32_bf16 v[{24+4*ct}:{27+4*ct}], v[{8+4*ks}:{11+4*ks}], v[{48+16*ks+4*ct}:{51+16*ks+4*ct}], {'0' if ks == 0 else f'v[{24+4*ct}:{27+4*ct}]'}")
    sc = fbits(128 ** -0.5 * math.log2(math.e))
    for ct in range(4):
        d = 24 + 4 * ct
        a(f"v_add_f32 v{d}, v{d}, v{d+1}\nv_add_f32 v{d+2}, v{d+2}, v{d+3}\nv_add_f32 v{d}, v{d}, v{d+2}")
    for ct in range(4): red16(a, "v_add_f32", 24 + 4 * ct, 25 + 4 * ct)
    for ct in range(4): a(f"v_mul_f32 v{24+4*ct}, {sc}, v{24+4*ct}")
    a("v_cvt_pk_bf16_f32 v8, v24, v28\nv_cvt_pk_bf16_f32 v9, v32, v36")
    a("v_lshrrev_b32 v3, 5, v0\nv_lshlrev_b32 v3, 15, v3\nv_lshl_add_u32 v3, v2, 3, v3")
    a(f"s_lshl_b32 s42, s98, 10\ns_lshl_b32 s43, s99, 7\ns_add_u32 s42, s42, s43\ns_add_u32 s42, s42, {QA}")
    a("s_mov_b32 exec_lo, 0xffff\ns_mov_b32 exec_hi, 0xffff")
    a(f"buffer_store_dwordx2 v[8:9], v3, {WS}, s42 offen")
    a("K2_end:\ns_endpgm")
    return kernel("k2_kernel", fix_hazards(a.text()), vgpr=112)

def fsw(i): return ((i & 7) << 1) | (i >> 3)
LQ, LP, LM = 131072, 131072 + 16384, 131072 + 16384 + 4096

def k3():
    a = Asm(); a.end = "K3_end"
    prologue(a, 256)
    WS = srd(a, "ws", 92); C = srd(a, "ckv", 36)
    a("s_and_b32 s50, s98, 1")
    a("s_lshr_b32 s51, s97, 4\ns_lshl_b32 s51, s51, 3\ns_add_u32 s51, s51, s99\ns_lshl_b32 s42, s96, 4\ns_add_u32 s51, s51, s42")
    a("v_lshlrev_b32 v3, 4, v0")
    a("s_lshl_b32 s42, s51, 17\ns_lshl_b32 s43, s3, 14\ns_add_u32 s42, s42, s43")
    for i in range(16):
        a(f"s_mov_b32 m0, s43\nv_xor_b32 v4, {fsw(i)*16}, v3\nbuffer_load_dwordx4 v4, {C}, s42 offen nt lds\ns_add_u32 s42, s42, 1024\ns_add_u32 s43, s43, 1024")
    a(f"s_lshr_b32 s42, s96, 2\ns_lshl_b32 s42, s42, 15\ns_lshl_b32 s43, s3, 12\ns_add_u32 s42, s42, s43\ns_lshl_b32 s43, s50, 10\ns_add_u32 s42, s42, s43\ns_add_u32 s42, s42, {QA}")
    a(f"buffer_load_dwordx4 v[8:11], v3, {WS}, s42 offen\nbuffer_load_dwordx4 v[12:15], v3, {WS}, s42 offen offset:2048")
    a(f"v_mov_b32 v4, 0xff800000\nv_lshlrev_b32 v5, 2, v2\nds_write_b32 v5, v4 offset:0")
    a.l.pop()
    a(f"v_add_u32 v16, {LM}, v5\nds_write_b32 v16, v4")
    a("v_and_b32 v4, 7, v2\nv_lshlrev_b32 v4, 1, v4\nv_lshrrev_b32 v5, 3, v2\nv_or_b32 v4, v4, v5")
    a("v_lshlrev_b32 v4, 4, v4\nv_lshl_add_u32 v4, v1, 8, v4\nv_lshl_add_u32 v4, v2, 10, v4\ns_lshl_b32 s43, s3, 14\nv_add_u32 v4, s43, v4")
    a("s_waitcnt vmcnt(2)")
    SF, PF = 64, 128
    for ks in range(16): a(f"v_xor_b32 v5, {ks*16}, v4\nds_read_b128 v[{SF+4*ks}:{SF+4*ks+3}], v5")
    a("s_waitcnt vmcnt(0)")
    a(f"s_lshl_b32 s42, s3, 5\ns_lshl_b32 s43, s3, 11\ns_add_u32 s43, s43, {LQ}\nv_xor_b32 v5, s42, v3\nv_add_u32 v5, s43, v5\nds_write_b128 v5, v[8:11]")
    a("v_xor_b32 v5, 16, v5\nds_write_b128 v5, v[12:15] offset:1024")
    a("s_waitcnt lgkmcnt(0)\ns_barrier")
    a("v_lshrrev_b32 v5, 2, v0\nv_and_b32 v6, 7, v5\nv_lshlrev_b32 v6, 1, v6\nv_lshrrev_b32 v7, 3, v5\nv_or_b32 v6, v6, v7")
    a("v_bfe_u32 v7, v0, 1, 1\nv_xor_b32 v6, v6, v7\ns_lshl_b32 s42, s3, 3\nv_xor_b32 v6, s42, v6\nv_lshlrev_b32 v6, 4, v6")
    a("v_lshl_add_u32 v6, v5, 10, v6\nv_and_b32 v7, 1, v0\nv_lshl_add_u32 v6, v7, 3, v6")
    for t in range(4):
        a(f"v_xor_b32 v7, {t*32}, v6\nv_add_u32 v17, 0x10000, v7")
        for ks in range(4):
            for e in range(2):
                o = (2 * ks + e) * 16384; r = PF + (ks * 4 + t) * 4 + 2 * e
                a(f"ds_read_b64_tr_b16 v[{r}:{r+1}], {'v7' if o < 65536 else 'v17'} offset:{o % 65536}")
        a("s_waitcnt lgkmcnt(0)")
    a(f"v_lshlrev_b32 v5, 4, v2\nv_lshl_add_u32 v5, v1, 8, v5\nv_lshl_add_u32 v5, v2, 10, v5\nv_add_u32 v5, {LQ}, v5")
    QB = 192
    for ks in range(16): a(f"v_xor_b32 v6, {ks*16}, v5\nds_read_b128 v[{QB+4*ks}:{QB+4*ks+3}], v6")
    for ks in range(16):
        a(f"s_waitcnt lgkmcnt({15-ks})")
        a(f"v_mfma_f32_16x16x32_bf16 v[8:11], v[{SF+4*ks}:{SF+4*ks+3}], v[{QB+4*ks}:{QB+4*ks+3}], {'0' if ks == 0 else 'v[8:11]'}")
    a("v_max3_f32 v12, v8, v9, v10\nv_max_f32 v12, v12, v11\nds_max_f32 v16, v12\ns_waitcnt lgkmcnt(0)\ns_barrier")
    a("ds_read_b32 v12, v16\ns_waitcnt lgkmcnt(0)\nv_ceil_f32 v12, v12")
    for r in range(4): a(f"v_sub_f32 v{8+r}, v{8+r}, v12")
    for r in range(4): a(f"v_exp_f32 v{8+r}, v{8+r}")
    a("v_cvt_pk_bf16_f32 v8, v8, v9\nv_cvt_pk_bf16_f32 v9, v10, v11")
    a(f"s_lshr_b32 s42, s3, 1\ns_lshl_b32 s42, s42, 10\ns_and_b32 s43, s3, 1\ns_lshl_b32 s43, s43, 3\ns_add_u32 s42, s42, s43\ns_add_u32 s42, s42, {LP}")
    a(f"v_add_u32 v5, s42, v3\nds_write_b64 v5, v[8:9]\nv_add_u32 v5, {LP}, v3\ns_waitcnt lgkmcnt(0)\ns_barrier")
    for ks in range(4): a(f"ds_read_b128 v[{20+4*ks}:{23+4*ks}], v5 offset:{ks*1024}")
    for ks in range(4):
        a(f"s_waitcnt lgkmcnt({3-ks})")
        for t in range(4):
            r = PF + (ks * 4 + t) * 4
            a(f"v_mfma_f32_16x16x32_bf16 v[{40+4*t}:{43+4*t}], v[{20+4*ks}:{23+4*ks}], v[{r}:{r+3}], {'0' if ks == 0 else f'v[{40+4*t}:{43+4*t}]'}")
    a("v_lshlrev_b32 v5, 20, v1\nv_lshl_add_u32 v5, v2, 3, v5")
    a(f"s_lshl_b32 s42, s50, 17\ns_lshl_b32 s43, s3, 14\ns_add_u32 s42, s42, s43\ns_lshl_b32 s43, s51, 7\ns_add_u32 s42, s42, s43\ns_add_u32 s42, s42, {PT}")
    for r in range(4):
        a(f"v_cvt_pk_bf16_f32 v{56+2*r}, v{40+r}, v{44+r}\nv_cvt_pk_bf16_f32 v{57+2*r}, v{48+r}, v{52+r}")
        a(f"buffer_store_dwordx2 v[{56+2*r}:{57+2*r}], v5, {WS}, s42 offen\ns_add_u32 s42, s42, 262144")
    a("s_cmp_lg_u32 s3, 0\ns_cbranch_scc1 K3_end")
    for r in range(4): a(f"v_mov_b32 v{36+r}, 0x3f803f80")
    for ks in range(4):
        a(f"v_mfma_f32_16x16x32_bf16 v[8:11], v[36:39], v[{20+4*ks}:{23+4*ks}], {'0' if ks == 0 else 'v[8:11]'}")
    a("v_mov_b32 v13, v8\nv_lshlrev_b32 v5, 3, v0")
    a(f"s_lshl_b32 s42, s50, 14\ns_lshl_b32 s43, s51, 7\ns_add_u32 s42, s42, s43\ns_add_u32 s42, s42, {ML}")
    a("s_mov_b64 exec, 0xffff")
    a(f"buffer_store_dwordx2 v[12:13], v5, {WS}, s42 offen")
    a("K3_end:\ns_endpgm")
    return kernel("k3_kernel", fix_hazards(a.text()), vgpr=256)

def k4():
    a = Asm(); a.end = "K4_end"
    prologue(a, 256)
    WS = srd(a, "ws", 92); W = srd(a, "wuv", 36)
    LA, LS = 16384, 16384 + 16 * 144
    a("v_lshlrev_b32 v3, 13, v1\nv_lshl_add_u32 v3, v2, 4, v3")
    a("s_lshl_b32 s42, s99, 19\ns_lshl_b32 s43, s98, 8\ns_add_u32 s42, s42, s43\ns_lshl_b32 s43, s3, 16\ns_add_u32 s42, s42, s43\ns_lshl_b32 s43, s3, 11")
    for u in range(2):
        a(f"s_mov_b32 m0, s43\ns_nop 0\nbuffer_load_dwordx4 v3, {W}, s42 offen nt lds\ns_add_u32 s42, s42, 32768\ns_add_u32 s43, s43, 1024")
    a("v_lshlrev_b32 v3, 4, v0")
    a(f"s_lshl_b32 s42, s98, 3\ns_add_u32 s42, s42, s99\ns_lshl_b32 s42, s42, 14\ns_lshl_b32 s43, s3, 11\ns_add_u32 s42, s42, s43\ns_add_u32 s42, s42, {PT}")
    a(f"buffer_load_dwordx4 v[8:11], v3, {WS}, s42 offen\nbuffer_load_dwordx4 v[12:15], v3, {WS}, s42 offen offset:1024")
    a("v_lshrrev_b32 v4, 3, v0\nv_lshlrev_b32 v4, 7, v4")
    a(f"s_and_b32 s42, s98, 1\ns_lshl_b32 s42, s42, 14\ns_add_u32 s42, s42, s43\ns_lshr_b32 s43, s98, 1\ns_lshl_b32 s43, s43, 3\ns_add_u32 s42, s42, s43\ns_add_u32 s42, s42, {ML}")
    a(f"buffer_load_dwordx2 v[16:17], v4, {WS}, s42 offen\nbuffer_load_dwordx2 v[18:19], v4, {WS}, s42 offen offset:1024")
    masks(a, 20, 24)
    a("s_waitcnt vmcnt(4)\ns_barrier")
    a("v_bfe_u32 v5, v0, 2, 2\nv_lshlrev_b32 v5, 12, v5\nv_lshl_add_u32 v5, v1, 9, v5\nv_and_b32 v6, 3, v0\nv_lshl_add_u32 v5, v6, 3, v5\ns_lshl_b32 s42, s3, 5\nv_add_u32 v5, s42, v5")
    for ks in range(2):
        for e in range(2): a(f"ds_read_b64_tr_b16 v[{48+4*ks+2*e}:{49+4*ks+2*e}], v5 offset:{(8*ks+e)*256}")
    a("s_waitcnt vmcnt(0)")
    a("v_max_f32 v24, v16, v18"); dpp(a, "v_max_f32", 24, "row_ror:8"); red16(a, "v_max_f32", 24, 26); red32(a, "v_max_f32", 24, 26)
    a("v_sub_f32 v16, v16, v24\nv_sub_f32 v18, v18, v24\nv_exp_f32 v16, v16\nv_exp_f32 v18, v18")
    a("v_cvt_pk_bf16_f32 v26, v16, v16\nv_cvt_pk_bf16_f32 v27, v18, v18")
    for r in range(4): a(f"v_and_b32 v{28+r}, v26, v{20+r}\nv_and_b32 v{32+r}, v27, v{20+r}")
    a("v_mfma_f32_16x16x32_bf16 v[36:39], v[28:31], v[8:11], 0\nv_mfma_f32_16x16x32_bf16 v[36:39], v[32:35], v[12:15], v[36:39]")
    a("v_mul_f32 v25, v16, v17\nv_fmac_f32 v25, v18, v19"); dpp(a, "v_add_f32", 25, "row_ror:8"); red16(a, "v_add_f32", 25, 26); red32(a, "v_add_f32", 25, 26)
    a(f"v_bfe_u32 v5, v0, 3, 1\nv_mul_u32_u24 v5, 144, v5\nv_and_b32 v6, 7, v0\nv_lshl_add_u32 v5, v6, 4, v5\nv_and_b32 v6, 1, v1\nv_lshl_add_u32 v5, v6, 3, v5\ns_mul_i32 s42, s3, 288\ns_add_u32 s42, s42, {LA}\nv_add_u32 v5, s42, v5")
    a("v_cvt_pk_bf16_f32 v36, v36, v37\nv_cvt_pk_bf16_f32 v37, v38, v39")
    a(f"s_lshl_b32 s42, s3, 3\ns_add_u32 s42, s42, {LS}\nv_mov_b32 v6, s42")
    a("s_mov_b32 exec_lo, 0x00ff00ff\ns_mov_b32 exec_hi, 0xff00ff00\nds_write_b64 v5, v[36:37]\ns_mov_b64 exec, 1\nds_write_b64 v6, v[24:25]\ns_mov_b64 exec, -1")
    a(f"v_mul_u32_u24 v5, 144, v2\nv_lshl_add_u32 v5, v1, 4, v5\nv_lshrrev_b32 v6, 5, v0\nv_lshlrev_b32 v6, 5, v6")
    a("s_waitcnt lgkmcnt(0)\ns_barrier")
    a(f"ds_read_b128 v[8:11], v5 offset:{LA}\nds_read_b128 v[12:15], v5 offset:{LA+64}\nds_read_b128 v[28:31], v6 offset:{LS}\nds_read_b128 v[32:35], v6 offset:{LS+16}")
    a("s_waitcnt lgkmcnt(2)")
    a("v_mfma_f32_16x16x32_bf16 v[36:39], v[8:11], v[48:51], 0\nv_mfma_f32_16x16x32_bf16 v[36:39], v[12:15], v[52:55], v[36:39]")
    a("s_waitcnt lgkmcnt(0)")
    a("v_max3_f32 v24, v28, v30, v32\nv_max_f32 v24, v24, v34")
    for k in range(4): a(f"v_sub_f32 v{28+2*k}, v{28+2*k}, v24")
    for k in range(4): a(f"v_exp_f32 v{28+2*k}, v{28+2*k}")
    a("v_mul_f32 v25, v28, v29\nv_fmac_f32 v25, v30, v31\nv_fmac_f32 v25, v32, v33\nv_fmac_f32 v25, v34, v35\nv_rcp_f32 v25, v25")
    a("v_and_b32 v26, 1, v1\nv_cmp_ne_u32 vcc, 0, v26\nv_cndmask_b32 v28, v28, v32, vcc\nv_cndmask_b32 v30, v30, v34, vcc")
    a("v_add_f32 v36, v36, v37\nv_add_f32 v38, v38, v39\nv_mul_f32 v36, v36, v28\nv_fmac_f32 v36, v38, v30\nv_mul_f32 v36, v36, v25")
    red16(a, "v_add_f32", 36, 37)
    a("v_lshrrev_b32 v5, 5, v0\nv_lshlrev_b32 v5, 6, v5\nv_lshl_add_u32 v5, v2, 2, v5")
    a(f"s_lshl_b32 s42, s98, 3\ns_add_u32 s42, s42, s3\ns_lshl_b32 s42, s42, 3\ns_add_u32 s42, s42, s99\ns_lshl_b32 s42, s42, 7\ns_add_u32 s42, s42, {CX}")
    a("s_mov_b32 exec_lo, 0xffff\ns_mov_b32 exec_hi, 0xffff")
    a(f"buffer_store_dword v36, v5, {WS}, s42 offen")
    a("K4_end:\ns_endpgm")
    return kernel("k4_kernel", fix_hazards(a.text()), vgpr=64)

def stage_gb(a, mlp, WS):
    W = srd(a, "w2" if mlp else "wo", 36)
    a(f"v_mul_u32_u24 v3, 4608, v1\nv_lshl_add_u32 v3, v2, 4, v3\ns_lshl_b32 s42, s3, 4\nv_add_u32 v5, s42, v2\nv_cmp_gt_u32 s[48:49], 72, v5")
    a.l[-1] = "    v_cmp_gt_u32 vcc, 72, v5"
    a(f"v_mov_b32 v6, {BIG}\nv_cndmask_b32 v3, v6, v3, vcc\nv_lshlrev_b32 v7, 4, v0\nv_cndmask_b32 v7, v6, v7, vcc")
    a("s_mul_i32 s42, s40, 1152\ns_lshl_b32 s43, s3, 8\ns_add_u32 s42, s42, s43")
    for t in range(4): a(f"buffer_load_dwordx4 v[{32+4*t}:{35+4*t}], v3, {W}, s42 offen offset:{1152*t} nt")
    a(f"buffer_load_dwordx4 v[8:11], v4, {WS}, s41 offen")
    if mlp:
        B = srd(a, "b1", 52)
        a(f"v_lshlrev_b32 v5, 3, v1\ns_lshl_b32 s42, s40, 1\nbuffer_load_dwordx2 v[12:13], v5, {B}, s42 offen")
    masks(a, 20, 24)
    a("s_waitcnt vmcnt(0)")
    red_lo8(a, "v_add_f32", [8, 9, 10, 11])
    if mlp:
        unpack(a, 14, 12, 4)
        for r in range(4): rbf(a, 8 + r)
        for r in range(4): a(f"v_add_f32 v{8+r}, v{8+r}, v{14+r}")
        for r in range(4): rbf(a, 8 + r)
        k1 = -2 * math.sqrt(2 / math.pi) * math.log2(math.e); k3 = k1 * 0.044715
        a(f"s_mov_b32 s42, {fbits(k3)}")
        for r in range(4): a(f"v_mul_f32 v{14+r}, v{8+r}, v{8+r}\nv_mov_b32 v24, {fbits(k1)}\nv_fma_f32 v{14+r}, v{14+r}, s42, v24\nv_mul_f32 v{14+r}, v{14+r}, v{8+r}")
        for r in range(4): a(f"v_exp_f32 v{14+r}, v{14+r}")
        for r in range(4): a(f"v_add_f32 v{14+r}, 1.0, v{14+r}")
        for r in range(4): a(f"v_rcp_f32 v{14+r}, v{14+r}")
        for r in range(4): a(f"v_mul_f32 v{8+r}, v{8+r}, v{14+r}")
    for t in range(4):
        ao = 48 + 4 * t
        a(f"v_cvt_pk_bf16_f32 v24, v{8+t}, v{8+t}")
        for r in range(4): a(f"v_and_b32 v{ao+r}, v24, v{20+r}")
    for t in range(4):
        a(f"v_mfma_f32_16x16x32_bf16 v[28:31], v[{48+4*t}:{51+4*t}], v[{32+4*t}:{35+4*t}], {'0' if t == 0 else 'v[28:31]'}")
    a("s_lshl_b32 s42, s3, 10\ns_add_u32 s44, s44, s42")
    a(f"buffer_store_dwordx4 v[28:31], v7, {WS}, s44 offen")

def k5():
    a = Asm(); a.end = "K5_end"
    prologue(a, 256)
    WS = srd(a, "ws", 92)
    a("s_lshl_b32 s40, s98, 7\ns_lshl_b32 s42, s99, 4\ns_add_u32 s40, s40, s42")
    a("v_and_b32 v4, 7, v0\nv_lshlrev_b32 v4, 7, v4\nv_bfe_u32 v5, v0, 3, 1\nv_lshl_add_u32 v4, v5, 6, v4\nv_lshl_add_u32 v4, v1, 4, v4")
    a(f"s_lshl_b32 s41, s98, 3\ns_add_u32 s41, s41, s99\ns_lshl_b32 s41, s41, 10\ns_add_u32 s41, s41, {CX}")
    a(f"s_mul_i32 s44, s2, 5120\ns_add_u32 s44, s44, {SP}")
    stage_gb(a, False, WS)
    a("K5_end:\ns_endpgm")
    return kernel("k5_kernel", fix_hazards(a.text()), vgpr=64)

def k5m():
    a = Asm(); a.end = "K5M_end"
    prologue(a, 288)
    WS = srd(a, "ws", 92)
    a("s_lshl_b32 s40, s2, 4")
    a("v_and_b32 v6, 7, v0\nv_lshlrev_b32 v4, 10, v6\nv_bfe_u32 v5, v0, 3, 1\nv_lshl_add_u32 v4, v5, 9, v4\nv_and_b32 v5, 1, v1\nv_lshl_add_u32 v4, v5, 8, v4\nv_lshrrev_b32 v5, 1, v1\nv_lshl_add_u32 v4, v5, 4, v4")
    a(f"v_mov_b32 v5, {BIG}\nv_cmp_gt_u32 vcc, 6, v6\nv_cndmask_b32 v4, v5, v4, vcc")
    a(f"s_mul_i32 s41, s97, 6144\ns_lshl_b32 s42, s96, 5\ns_add_u32 s41, s41, s42\ns_add_u32 s41, s41, {HP}")
    a(f"s_mul_i32 s44, s2, 5120\ns_add_u32 s44, s44, {OP}")
    stage_gb(a, True, WS)
    a("K5M_end:\ns_endpgm")
    return kernel("k5m_kernel", fix_hazards(a.text()), vgpr=64)

def k6():
    a = Asm(); a.end = "K6_end"
    prologue(a, 36)
    WS = srd(a, "ws", 92); X = srd(a, "x", 32); B2 = srd(a, "b2", 36); O = srd(a, "out", 52)
    a("s_lshl_b32 s40, s2, 7\ns_lshl_b32 s41, s2, 8\ns_sub_u32 s41, s41, 4096\ns_cmp_ge_u32 s2, 32\ns_cselect_b32 s40, s41, s40")
    a("v_lshrrev_b32 v3, 3, v0\nv_mul_u32_u24 v3, 5120, v3\nv_and_b32 v4, 7, v0\nv_lshl_add_u32 v3, v4, 4, v3")
    a(f"s_mul_i32 s42, s3, {32*5120}\ns_add_u32 s42, s42, s40\ns_add_u32 s42, s42, {SP}")
    for u in range(4): a(f"buffer_load_dwordx4 v[{8+4*u}:{11+4*u}], v3, {WS}, s42 offen\ns_add_u32 s42, s42, {8*5120}")
    a(f"s_mul_i32 s42, s3, {36*5120}\ns_add_u32 s42, s42, s40\ns_add_u32 s42, s42, {OP}")
    for u in range(4): a(f"buffer_load_dwordx4 v[{24+4*u}:{27+4*u}], v3, {WS}, s42 offen\ns_add_u32 s42, s42, {8*5120}")
    a(f"v_mov_b32 v5, {BIG}\nv_cmp_gt_u32 vcc, 32, v0\nv_cndmask_b32 v5, v5, v3, vcc\nbuffer_load_dwordx4 v[40:43], v5, {WS}, s42 offen")
    a("s_lshr_b32 s44, s40, 10\ns_lshl_b32 s44, s44, 7\ns_bfe_u32 s45, s40, 0x10007\ns_lshl_b32 s45, s45, 6\ns_add_u32 s44, s44, s45\ns_bfe_u32 s45, s40, 0x10008\ns_lshl_b32 s45, s45, 2\ns_add_u32 s44, s44, s45\ns_lshl_b32 s44, s44, 1")
    a("s_bfe_u32 s45, s40, 0x10009\ns_mul_i32 s45, s45, 1152\ns_add_u32 s45, s45, s44\nv_lshlrev_b32 v6, 4, v4")
    a(f"buffer_load_dwordx2 v[44:45], v6, {X}, s45 offen\nbuffer_load_dwordx2 v[46:47], v6, {B2}, s44 offen")
    a("s_waitcnt vmcnt(2)")
    for r in range(4):
        a(f"v_add_f32 v{8+r}, v{8+r}, v{12+r}\nv_add_f32 v{16+r}, v{16+r}, v{20+r}\nv_add_f32 v{8+r}, v{8+r}, v{16+r}")
        a(f"v_add_f32 v{24+r}, v{24+r}, v{28+r}\nv_add_f32 v{32+r}, v{32+r}, v{36+r}\nv_add_f32 v{24+r}, v{24+r}, v{32+r}\nv_add_f32 v{12+r}, v{24+r}, v{40+r}")
    def redhi():
        for v in range(8, 16): dpp(a, "v_add_f32", v, "row_ror:8")
        for v in range(8, 16): red16(a, "v_add_f32", v, v + 8)
        for v in range(8, 16): red32(a, "v_add_f32", v, v + 8)
    redhi()
    a("s_lshl_b32 s42, s3, 8\nv_lshlrev_b32 v5, 5, v4\nv_add_u32 v5, s42, v5\ns_mov_b64 exec, 0xff\nds_write_b128 v5, v[8:11]\nds_write_b128 v5, v[12:15] offset:16\ns_mov_b64 exec, -1")
    a("s_waitcnt lgkmcnt(0)\ns_barrier\ns_cmp_lg_u32 s3, 0\ns_cbranch_scc1 K6_end")
    a("v_lshlrev_b32 v5, 5, v0\nds_read_b128 v[8:11], v5\nds_read_b128 v[12:15], v5 offset:16\ns_waitcnt vmcnt(0) lgkmcnt(0)")
    redhi()
    unpack(a, 16, 44, 4); unpack(a, 20, 46, 4)
    for r in range(4): rbf(a, 8 + r); rbf(a, 12 + r)
    for r in range(4): a(f"v_add_f32 v{12+r}, v{12+r}, v{20+r}")
    for r in range(4): rbf(a, 12 + r)
    for r in range(4): a(f"v_mul_f32 v{20+r}, {fbits(-math.log2(math.e))}, v{12+r}")
    for r in range(4): a(f"v_exp_f32 v{20+r}, v{20+r}")
    for r in range(4): a(f"v_add_f32 v{20+r}, 1.0, v{20+r}")
    for r in range(4): a(f"v_rcp_f32 v{20+r}, v{20+r}")
    for r in range(4): a(f"v_mul_f32 v{12+r}, v{12+r}, v{20+r}")
    for r in range(4): rbf(a, 12 + r)
    for r in range(4): a(f"v_mul_f32 v{8+r}, v{8+r}, v{12+r}")
    for r in range(4): rbf(a, 8 + r)
    for r in range(4): a(f"v_add_f32 v{8+r}, v{8+r}, v{16+r}")
    a("v_cvt_pk_bf16_f32 v8, v8, v9\nv_cvt_pk_bf16_f32 v9, v10, v11\ns_mov_b64 exec, 0xff")
    a(f"buffer_store_dwordx2 v[8:9], v6, {O}, s45 offen")
    a("K6_end:\ns_endpgm")
    return kernel("k6_kernel", fix_hazards(a.text()), vgpr=64)

def gen():
    L = ["kernel=k1_kernel grid=(256,1,1) block=(128,1,1) lds=0",
         "kernel=k2_kernel grid=(256,1,1) block=(64,1,1) lds=16384",
         "kernel=k5m_kernel grid=(288,1,1) block=(320,1,1) lds=0",
         f"kernel=k3_kernel grid=(256,1,1) block=(512,1,1) lds={LM+64}",
         "kernel=k4_kernel grid=(256,1,1) block=(512,1,1) lds=20480",
         "kernel=k5_kernel grid=(256,1,1) block=(320,1,1) lds=0",
         "kernel=k6_kernel grid=(36,1,1) block=(512,1,1) lds=2048"]
    return header(L) + k1() + k2() + k5m() + k3() + k4() + k5() + k6()

if __name__ == "__main__":
    open("mk.s", "w").write(gen())
```

```python
import sys
from asmlib import *

def gen(nwaves=8, flags="nt", rq=1, rkv=1, ro=1, shflags=None, barriers=False, order=("wq","wuk","ckv","w1","w2","wuv","wo"), dma=False):
    if shflags is None: shflags = flags
    a = Asm()
    a("s_memrealtime s[40:41]")
    a("s_cmp_ge_u32 s2, 256\ns_cbranch_scc1 L_end")
    a("s_load_dwordx16 s[4:19], s[0:1], 0")
    a("s_load_dwordx8 s[20:27], s[0:1], 64")
    a("s_load_dwordx4 s[28:31], s[0:1], 96")
    a("v_lshrrev_b32 v1, 6, v0\ns_nop 0\nv_readfirstlane_b32 s3, v1")
    a("v_and_b32 v2, 63, v0\nv_lshlrev_b32 v2, 4, v2")
    a("v_and_b32 v3, 15, v0\nv_lshlrev_b32 v3, 4, v3\nv_bfe_u32 v4, v0, 4, 2\nv_lshl_add_u32 v3, v4, 13, v3")
    a("s_and_b32 s96, s2, 7\ns_lshr_b32 s97, s2, 3")
    a("s_lshr_b32 s98, s97, 3\ns_lshl_b32 s99, s96, 2\ns_add_u32 s98, s98, s99")
    a("s_and_b32 s99, s97, 7")
    a("s_waitcnt lgkmcnt(0)")
    ptr = dict(x=4, ckv=6, wq=8, wuk=10, wuv=12, wo=14, w1=18, w2=22)
    srd = 60; srds = {}
    for n in order:
        a(f"s_mov_b32 s{srd}, s{ptr[n]}\ns_and_b32 s{srd+1}, s{ptr[n]+1}, 0xffff\ns_mov_b32 s{srd+2}, {SIZE[n]}\ns_mov_b32 s{srd+3}, 0x20000")
        srds[n] = srd; srd += 4
    a("s_memrealtime s[42:43]")
    st = [8, 0]
    def ld(n, voff, soff, fl):
        v = st[0]
        if dma:
            a(f"buffer_load_dwordx4 {voff}, s[{srds[n]}:{srds[n]+3}], {soff} offen {fl} lds")
        else:
            a(f"buffer_load_dwordx4 v[{v}:{v+3}], {voff}, s[{srds[n]}:{srds[n]+3}], {soff} offen {fl}")
        st[0] = 8 + (v - 8 + 4) % 96; st[1] += 1
    if dma:
        a("s_lshl_b32 s32, s3, 10\ns_mov_b32 m0, s32")
    stamp = 44
    for n in order:
        if n == "wq":
            tot = 18 * rq
            for r in range((tot + nwaves - 1) // nwaves):
                L = a.label()
                a(f"s_add_u32 s32, s3, {r*nwaves}")
                if (r + 1) * nwaves > tot: a(f"s_cmp_ge_u32 s32, {tot}\ns_cbranch_scc1 {L}")
                a(f"s_mul_i32 s33, s99, 18\ns_add_u32 s32, s32, s33\ns_sub_u32 s33, s32, 144\ns_cmp_ge_u32 s32, 144\ns_cselect_b32 s32, s33, s32")
                a(f"s_lshl_b32 s32, s32, 15\ns_lshl_b32 s33, s98, 8\ns_add_u32 s34, s32, s33")
                ld(n, "v3", "s34", shflags if rq > 1 else flags)
                a(f"{L}:")
        elif n in ("wuk", "wuv"):
            for r in range(16 // nwaves):
                a(f"s_lshl_b32 s32, s99, 4\ns_add_u32 s32, s32, s3\ns_add_u32 s32, s32, {r*nwaves}\ns_lshl_b32 s32, s32, 15\ns_lshl_b32 s33, s98, 8\ns_add_u32 s34, s32, s33")
                ld(n, "v3", "s34", flags)
        elif n == "ckv":
            tot = 64 * rkv
            for r in range(tot // nwaves):
                a(f"s_and_b32 s32, s97, 1\ns_lshl_b32 s32, s32, 6\ns_add_u32 s32, s32, s3\ns_add_u32 s32, s32, {r*nwaves}\ns_and_b32 s32, s32, 127")
                a(f"s_lshr_b32 s33, s97, 1\ns_lshl_b32 s35, s96, 4\ns_add_u32 s33, s33, s35\ns_lshl_b32 s33, s33, 7\ns_add_u32 s32, s32, s33\ns_lshl_b32 s34, s32, 10")
                ld(n, "v2", "s34", shflags if rkv > 1 else flags)
        elif n == "wo":
            tot = 18 * ro
            for r in range((tot + nwaves - 1) // nwaves):
                L = a.label()
                a(f"s_add_u32 s32, s3, {r*nwaves}")
                if (r + 1) * nwaves > tot: a(f"s_cmp_ge_u32 s32, {tot}\ns_cbranch_scc1 {L}")
                a(f"s_mul_i32 s33, s99, 18\ns_add_u32 s32, s32, s33\ns_sub_u32 s33, s32, 144\ns_cmp_ge_u32 s32, 144\ns_cselect_b32 s32, s33, s32")
                a(f"s_lshl_b32 s32, s32, 10\ns_mul_i32 s33, s98, 147456\ns_add_u32 s34, s32, s33")
                ld(n, "v2", "s34", shflags if ro > 1 else flags)
                a(f"{L}:")
        else:
            tot = 20
            for r in range((tot + nwaves - 1) // nwaves):
                L = a.label()
                a(f"s_add_u32 s32, s3, {r*nwaves}")
                if (r + 1) * nwaves > tot: a(f"s_cmp_ge_u32 s32, {tot}\ns_cbranch_scc1 {L}")
                a(f"s_lshl_b32 s32, s32, 10\ns_mul_i32 s33, s2, 20736\ns_add_u32 s34, s32, s33")
                ld(n, "v2", "s34", flags)
                a(f"{L}:")
        if barriers: a("s_barrier")
        a(f"s_memrealtime s[{stamp}:{stamp+1}]"); stamp += 2
    a(f"s_waitcnt vmcnt(0)\ns_memrealtime s[{stamp}:{stamp+1}]")
    a("s_waitcnt lgkmcnt(0)")
    a(f"s_mul_i32 s32, s2, {nwaves}\ns_add_u32 s32, s32, s3\ns_lshl_b32 s32, s32, 6")
    a("s_mov_b32 s92, s30\ns_and_b32 s93, s31, 0xffff\ns_mov_b32 s94, 0x10000000\ns_mov_b32 s95, 0x20000")
    regs = [40, 42] + [44 + 2 * i for i in range(len(order) + 1)]
    a("v_mov_b32 v5, 0")
    for i, r in enumerate(regs):
        a(f"v_mov_b32 v6, s{r}\nbuffer_store_dword v6, v5, s[92:95], s32 offen offset:{4*i}\ns_nop 1")
    a("L_end:\ns_endpgm")
    return header([f"grid=(256,1,1) block=({nwaves*64},1,1) lds=100000"]) + kernel(NAME + "_kernel", a.text(), vgpr=104)

VARS = dict(
  base=dict(), baseb=dict(barriers=True),
  kv2=dict(rkv=2, barriers=True), kv2d=dict(rkv=2, barriers=True, shflags=""),
  q8=dict(rq=8, barriers=True), q8d=dict(rq=8, barriers=True, shflags=""),
  all8=dict(rq=8, rkv=2, ro=8, barriers=True), all8d=dict(rq=8, rkv=2, ro=8, barriers=True, shflags=""),
  dma=dict(barriers=True, dma=True), all8dma=dict(rq=8, rkv=2, ro=8, barriers=True, dma=True),
  w16=dict(nwaves=16, barriers=True), w4=dict(nwaves=4, barriers=True),
)
if __name__ == "__main__":
    for name, kw in VARS.items():
        open(f"s2_{name}.s", "w").write(gen(**kw))
```

```python
import re
from asmlib import *
import gen_mk as G
import gen_stream2 as S
OFF = 0x3000000
def amp(i0, i1, mult, perwave=False):
    a = Asm()
    a("s_cmp_ge_u32 s2, 1\ns_cbranch_scc1 A_end")
    a("s_load_dwordx4 s[28:31], s[0:1], 96\ns_waitcnt lgkmcnt(0)")
    a("s_mov_b32 s92, s30\ns_and_b32 s93, s31, 0xffff\ns_mov_b32 s94, 0x10000000\ns_mov_b32 s95, 0x20000")
    a(f"v_lshlrev_b32 v1, 6, v0\ns_mov_b32 s4, {OFF}\nv_mov_b32 v7, 0")
    a(f"buffer_load_dword v6, v7, s[92:95], s4 offen offset:{4*i0}\ns_waitcnt vmcnt(0)")
    a("v_mov_b32 v2, 0x7fffffff\nv_mov_b32 v3, 0x80000000\ns_mov_b32 s5, 0")
    a(f"A_l:\nbuffer_load_dword v4, v1, s[92:95], s4 offen offset:{4*i0}\nbuffer_load_dword v5, v1, s[92:95], s4 offen offset:{4*i1}\ns_waitcnt vmcnt(0)")
    if perwave: a("v_sub_u32 v5, v5, v4\nv_mov_b32 v4, 0")
    else: a("v_sub_u32 v4, v4, v6\nv_sub_u32 v5, v5, v6")
    a("v_min_i32 v2, v2, v4\nv_max_i32 v3, v3, v5\ns_add_u32 s4, s4, 4096\ns_add_u32 s5, s5, 1\ns_cmp_lt_u32 s5, 32\ns_cbranch_scc1 A_l")
    a("s_mov_b32 s6, 0x7fffffff\ns_mov_b32 s7, 0x80000000\ns_mov_b32 s5, 0")
    a("A_r:\nv_readlane_b32 s8, v2, s5\nv_readlane_b32 s9, v3, s5\ns_nop 3\ns_min_i32 s6, s6, s8\ns_max_i32 s7, s7, s9\ns_add_u32 s5, s5, 1\ns_cmp_lt_u32 s5, 64\ns_cbranch_scc1 A_r")
    a(f"s_sub_u32 s7, s7, s6\ns_min_u32 s7, s7, 5000\ns_mul_i32 s7, s7, {mult}\ns_memrealtime s[10:11]\ns_waitcnt lgkmcnt(0)")
    a("A_s:\ns_memrealtime s[12:13]\ns_waitcnt lgkmcnt(0)\ns_sub_u32 s12, s12, s10\ns_cmp_lt_u32 s12, s7\ns_cbranch_scc1 A_s")
    a("A_end:\ns_endpgm")
    return kernel("amp_kernel", a.text(), vgpr=16)

def probe(kw, i0, i1, mult=20, perwave=False):
    s = S.gen(**kw)
    s = s[s.index(".text\n.globl"):].replace(NAME + "_kernel", "st_kernel")
    k = s.rindex("s_lshl_b32 s32, s32, 6\n") + len("s_lshl_b32 s32, s32, 6\n")
    s = s[:k] + f"    s_add_u32 s32, s32, {OFF}\n" + s[k:]
    base = G.gen()
    i = base.index(".amdgcn_target")
    return "; @launch kernel=st_kernel grid=(256,1,1) block=(512,1,1) lds=100000\n; @launch kernel=amp_kernel grid=(1,1,1) block=(64,1,1) lds=0\n" + base + s + amp(i0, i1, mult, perwave)
if __name__ == "__main__":
    V = dict(p0=(dict(barriers=True), 0, 9, 0), p1=(dict(barriers=True), 0, 9, 20), p2=(dict(barriers=True, flags=""), 0, 9, 20),
             p3=(dict(barriers=True), 0, 0, 20), p4=(dict(barriers=True), 0, 1, 20, True), p5=(dict(barriers=True), 0, 9, 20, True))
    for n, v in V.items():
        open(f"probe_{n}.s", "w").write(probe(*v))
```

```python
from asmlib import *
import gen_mk as G
def lat(name, n, stride, base=0, fl=""):
    a = Asm()
    a("s_cmp_ge_u32 s2, 1\ns_cbranch_scc1 A_end")
    a("s_load_dwordx16 s[4:19], s[0:1], 0\ns_load_dwordx8 s[20:27], s[0:1], 64\ns_load_dwordx4 s[28:31], s[0:1], 96\ns_waitcnt lgkmcnt(0)")
    S = G.srd(a, name, 36)
    a("s_mov_b64 exec, 1")
    a(f"v_mov_b32 v1, {base}\ns_mov_b32 s5, 0")
    a(f"A_l:\nbuffer_load_dword v4, v1, {S}, 0 offen {fl}\ns_waitcnt vmcnt(0)\nv_add_u32 v1, {stride}, v1")
    a(f"s_add_u32 s5, s5, 1\ns_cmp_lt_u32 s5, {n}\ns_cbranch_scc1 A_l")
    a("A_end:\ns_endpgm")
    base_s = G.gen()
    return "; @launch kernel=amp_kernel grid=(1,1,1) block=(64,1,1) lds=0\n" + base_s + kernel("amp_kernel", a.text(), vgpr=16)
V = dict(q0=("ckv", 1, 0), q1=("ckv", 1001, 16768), q2=("wq", 1001, 4608+0), q3=("w2", 1001, 5248), q4=("ws", 1001, 4480), q5=("ws", 1001, 4480, 0xf800000))
for n, v in V.items():
    open(f"probe_{n}.s", "w").write(lat(*v))
```
